```python
import torch

def _softmax(x, axis=-1):
    return torch.softmax(x, dim=axis)
def _gelu(x):
    return torch.nn.functional.gelu(x, approximate="tanh")
def _silu(x):
    return torch.nn.functional.silu(x)
def _sigmoid(x):
    return torch.sigmoid(x)
def _layernorm(x, axis=-1, eps=1e-5):
    m = x.mean(dim=axis, keepdim=True)
    v = x.var(dim=axis, keepdim=True, unbiased=False)
    return (x - m) / torch.sqrt(v + eps)
def _scatter_add(tgt, idx, src, axis=0):
    return tgt.clone().index_add_(axis, idx, src)
def _segment_sum(src, seg, n):
    out = torch.zeros((n,) + src.shape[1:], dtype=src.dtype)
    return out.index_add_(0, seg, src)
def _pad(x, pw):
    flat = tuple(v for pair in reversed(pw) for v in pair)
    return torch.nn.functional.pad(x, flat)

kernel_name = 'gated_mix__linear_kernel_hedgehog__glu_gated_swiglu__prompt'

def setup_inputs():

    _w = (lambda a: (lambda t: t.to(torch.bfloat16) if t.is_floating_point() else t)(torch.as_tensor(a)))
    def _A_setup():
        B, S, D, H = 1, 2048, 576, 32
        Dh = D // H
        return {
            "x": _w((lambda *s: torch.randn(*s, dtype=torch.bfloat16) * 0.05)(B, S, D)),
            "wqkv": _w((lambda *s: torch.randn(*s, dtype=torch.bfloat16) * 0.8)(D, 3 * D)),
            "w_phi": _w((lambda *s: torch.randn(*s, dtype=torch.bfloat16) * 0.8)(H, Dh, Dh) * (Dh ** -0.5)),
            "wo": _w((lambda *s: torch.randn(*s, dtype=torch.bfloat16) * 0.05)(D, D)),
        }
    _A_in = _A_setup()

    def _B_setup():
        B, S, D, F = 1, 2048, 576, 4608
        return {
            "x": _w((lambda *s: torch.randn(*s, dtype=torch.bfloat16) * 0.05)(B, S, D)),
            "w1": _w((lambda *s: torch.randn(*s, dtype=torch.bfloat16) * 1.6)(D, F) * (2.0 / D) ** 0.5),
            "w3": _w((lambda *s: torch.randn(*s, dtype=torch.bfloat16) * 1.6)(D, F) * (2.0 / D) ** 0.5),
            "w2": _w((lambda *s: torch.randn(*s, dtype=torch.bfloat16) * 1.6)(F, D) * (2.0 / F) ** 0.5),
        }
    _B_in = _B_setup()

    return {
        "A_x": _A_in["x"],
        "A_wqkv": _A_in["wqkv"],
        "A_w_phi": _A_in["w_phi"],
        "A_wo": _A_in["wo"],
        "B_x": _B_in["x"],
        "B_w1": _B_in["w1"],
        "B_w3": _B_in["w3"],
        "B_w2": _B_in["w2"],
        "gate_w": _w((lambda *s: torch.randn(*s, dtype=torch.bfloat16) * 0.05)(576) * 16.0),
    }

def reference(A_x, A_wqkv, A_w_phi, A_wo, B_x, B_w1, B_w3, B_w2, gate_w):
    def _A_ref(x, wqkv, w_phi, wo):
        B, S, D = x.shape
        H = 32; Dh = D // H
        qkv = (lambda x, *d: x.permute(*d))((x @ wqkv).reshape(B, S, 3, H, Dh), 2, 0, 3, 1, 4)
        q, k, v = qkv[0], qkv[1], qkv[2]
        pq = torch.einsum("bhsd,hdf->bhsf", q, w_phi)
        pk = torch.einsum("bhsd,hdf->bhsf", k, w_phi)
        phi_q = torch.concatenate([_softmax(pq, axis=-1), _softmax(-pq, axis=-1)], axis=-1)
        phi_k = torch.concatenate([_softmax(pk, axis=-1), _softmax(-pk, axis=-1)], axis=-1)
        kv = torch.einsum("bhsf,bhsd->bhfd", phi_k, v)
        z  = torch.einsum("bhsf->bhf", phi_k)
        num = torch.einsum("bhqf,bhfd->bhqd", phi_q, kv)
        den = torch.einsum("bhqf,bhf->bhq", phi_q, z)[..., None] + 1e-6
        o = num / den
        return (lambda x, *d: x.permute(*d))(o, 0, 2, 1, 3).reshape(B, S, D) @ wo

    def _B_ref(x, w1, w3, w2):
        gate = torch.einsum("bsd,df->bsf", x, w1)
        up = torch.einsum("bsd,df->bsf", x, w3)
        h = _silu(gate) * up
        out = torch.einsum("bsf,fd->bsd", h, w2)
        return out

    x = A_x
    g = _sigmoid((x * gate_w).sum(-1, keepdims=True))
    a = _A_ref(x, A_wqkv, A_w_phi, A_wo)
    b = _B_ref(x, B_w1, B_w3, B_w2)
    return g * a + (1 - g) * b
```

```python
import re
TRANS = ("v_exp_f32", "v_rcp_f32", "v_log_f32", "v_rsq_f32", "v_sqrt_f32")
REG = re.compile(r"(?<![\w.])(-?)([vas])(?:(\d+)|\[(\d+):(\d+)\])(?![\w])")

def regs_of(tok):
    out = []
    for m in REG.finditer(tok):
        k = m.group(2)
        if m.group(3) is not None: out.append((k, int(m.group(3))))
        else: out += [(k, i) for i in range(int(m.group(4)), int(m.group(5)) + 1)]
    for sp in ("vcc", "exec", "m0"):
        if re.search(r"(?<![\w])" + sp + r"(?![\w])", tok): out.append((sp, 0))
    return out

class Ins:
    __slots__ = ("text", "op", "kind", "rd", "wr", "tag", "srcc", "ab")
    def __init__(self, text, tag=None):
        self.text = text; self.tag = tag
        t = text.split(";")[0].strip()
        self.srcc = []; self.ab = []
        if t.endswith(":") or not t:
            self.op = "label"; self.kind = "label"; self.rd = []; self.wr = []; return
        sp = t.split(None, 1); op = sp[0]; self.op = op
        ops = [o.strip() for o in sp[1].split(",")] if len(sp) > 1 else []
        R = [regs_of(o) for o in ops]
        flat = lambda l: [x for y in l for x in y]
        if op.startswith("v_mfma"):
            self.kind = "mfma"; self.wr = R[0]; self.rd = flat(R[1:]); self.srcc = R[3]; self.ab = R[1] + R[2]
        elif op.startswith("ds_read"):
            self.kind = "ds"; self.wr = R[0]; self.rd = flat(R[1:])
        elif op.startswith("ds_write"):
            self.kind = "ds"; self.wr = []; self.rd = flat(R)
        elif op.startswith("buffer_load"):
            self.kind = "vm"
            if re.search(r"\blds\b", t): self.wr = []; self.rd = flat(R) + [("m0", 0)]
            else: self.wr = R[0]; self.rd = flat(R[1:])
        elif op.startswith("buffer_store"):
            self.kind = "vm"; self.wr = []; self.rd = flat(R)
        elif op.startswith("v_cmp"):
            self.kind = "valu"; self.wr = R[0]; self.rd = flat(R[1:])
        elif op.startswith("v_permlane"):
            self.kind = "valu"; self.wr = R[0] + R[1]; self.rd = R[0] + R[1]
        elif op.startswith("v_"):
            self.kind = "valu"; self.wr = R[0]; self.rd = flat(R[1:])
            if op.startswith("v_fmac"): self.rd += R[0]
        elif op.startswith("s_load") or op.startswith("s_memtime") or op.startswith("s_memrealtime"):
            self.kind = "smem"; self.wr = R[0]; self.rd = flat(R[1:])
        elif op in ("s_waitcnt", "s_barrier", "s_nop", "s_endpgm", "s_sleep", "s_setprio") or op.startswith("s_cbranch") or op == "s_branch":
            self.kind = "ctl"; self.wr = []; self.rd = [("vcc", 0)] if "vcc" in op else []
        elif op.startswith("s_cmp"):
            self.kind = "salu"; self.wr = []; self.rd = flat(R)
        elif op.startswith("s_"):
            self.kind = "salu"; self.wr = R[0]; self.rd = flat(R[1:])
            if "saveexec" in op: self.wr = self.wr + [("exec", 0)]
        else:
            raise ValueError("unknown instr " + t)
    def cost(self):
        if self.kind == "label": return 0
        if self.op in TRANS: return 2
        return 1
    def states(self):
        if self.kind == "label": return 0
        if self.op == "s_nop": return int(self.text.split()[1]) + 1
        return 1

class Prog:
    def __init__(self):
        self.ins = []; self.nvm = 0; self.nds = 0
        self.vm_done = 0; self.ds_done = 0
        self.pend = {}
        self.autowaits = 0; self.nops = 0; self.tail = []
    def wait(self, vm=None, ds=None):
        parts = []
        if vm is not None and vm > self.vm_done:
            n = min(self.nvm - vm, 63); parts.append(f"vmcnt({n})"); self.vm_done = self.nvm - n
        if ds is not None and ds > self.ds_done:
            n = min(self.nds - ds, 15); parts.append(f"lgkmcnt({n})"); self.ds_done = self.nds - n
        if parts: self._emit(Ins("s_waitcnt " + " ".join(parts))); return True
        return False
    def wait_regs(self, regs):
        vm = ds = None
        for r in regs:
            p = self.pend.get(r)
            if p:
                if p[0] == "vm" and p[1] > self.vm_done: vm = max(vm or 0, p[1])
                if p[0] == "ds" and p[1] > self.ds_done: ds = max(ds or 0, p[1])
        return self.wait(vm, ds)
    def _need(self, it):
        need = 0; dist = 0
        rd = set(it.rd); wr = set(it.wr); acc = rd | wr
        for p in reversed(self.ins[-24:]):
            if p.kind == "label": continue
            req = 0; pw = set(p.wr)
            if p.kind == "valu":
                pv = {r for r in pw if r[0] in "va" and r[0] != "vcc"}; ps = {r for r in pw if r[0] in ("s", "vcc")}
                if it.kind == "mfma" and pv & rd: req = 2
                if p.op in TRANS and it.kind == "valu" and it.op not in TRANS and pv & rd: req = max(req, 1)
                if it.op.startswith("v_permlane") and pv & rd: req = max(req, 2)
                if (it.op.startswith("v_readfirstlane") or it.op.startswith("v_readlane")) and pv & rd: req = max(req, 1)
                if it.kind == "vm" and ps & rd: req = max(req, 5)
                if it.kind == "valu" and ps & rd: req = max(req, 2)
                if it.kind in ("salu", "ctl") and ps & rd: req = max(req, 2)
            if p.kind == "mfma":
                if it.kind == "mfma":
                    if pw & set(it.ab): req = 8
                    elif pw & set(it.srcc) and pw != set(it.srcc): req = 6
                    elif pw & wr and pw != set(it.srcc): req = 8
                elif it.kind in ("valu", "vm", "ds") and pw & acc: req = 8
                if it.kind == "valu" and set(p.srcc) & wr: req = max(req, 3)
            if p.kind == "salu" and ("m0", 0) in pw and ("m0", 0) in rd and it.kind == "vm": req = 1
            if p.kind == "vm" and p.op.startswith("buffer_store") and p.op[-2:] in ("x3", "x4") and it.kind != "ctl" and set(p.rd) & {r for r in wr if r[0] in "va"}: req = 2
            need = max(need, req - dist)
            dist += p.states()
            if dist >= 12: break
        return need
    def _emit(self, it):
        n = self._need(it)
        if n > 0:
            self.ins.append(Ins(f"s_nop {n-1}")); self.nops += n
        self.ins.append(it)
    def I(self, text, tag=None):
        r = None
        for line in text.strip().split("\n"):
            line = line.strip()
            if not line: continue
            it = Ins(line, tag)
            if it.kind != "label" and self.wait_regs(it.rd + it.wr): self.autowaits += 1
            self._emit(it)
            if it.kind == "vm":
                self.nvm += 1; r = self.nvm
                assert self.nvm - self.vm_done <= 63, "too many vm ops in flight: " + line
                for x in it.wr: self.pend[x] = ("vm", r)
            elif it.kind == "ds":
                self.nds += 1; r = self.nds
                for x in it.wr: self.pend[x] = ("ds", r)
            elif it.op == "s_waitcnt":
                m = re.search(r"vmcnt\((\d+)\)", line)
                if m: self.vm_done = max(self.vm_done, self.nvm - int(m.group(1)))
                m = re.search(r"lgkmcnt\((\d+)\)", line)
                if m: self.ds_done = max(self.ds_done, self.nds - int(m.group(1)))
        return r
    def text(self):
        return "\n".join(i.text for i in self.ins) + "\n" + "\n".join(self.tail) + "\n"

class Item:
    def __init__(self, what, at=0, cost=None, name=None, cond=None):
        self.what = what; self.at = at; self.name = name; self.cond = cond
        self.cost = cost if cost is not None else (sum(Ins(l.strip()).cost() for l in what.strip().split("\n")) if isinstance(what, str) else 1)

class Sched:
    def __init__(self, p, cap=2):
        self.p = p; self.cap = cap; self.n = 0; self.q = {}; self.order = []; self.done = set(); self.forced = 0; self.over = 0; self.log = []
    def queue(self, name):
        if name not in self.q: self.q[name] = []; self.order.append(name)
        return self.q[name]
    def add(self, qname, what, at=None, cost=None, name=None, cond=None):
        self.queue(qname).append(Item(what, self.n if at is None else at, cost, name, cond))
    def _do(self, it):
        if it.cond: self.require(it.cond)
        if isinstance(it.what, str): self.p.I(it.what)
        else: it.what()
        if it.name: self.done.add(it.name)
    def require(self, name):
        if name in self.done: return
        for qn in self.order:
            if any(i.name == name for i in self.q[qn]):
                f0 = self.forced
                while name not in self.done:
                    it = self.q[qn].pop(0); self.forced += it.cost; self._do(it)
                if self.forced > f0: self.log.append((self.n, name, self.forced - f0))
                return
        raise KeyError(name)
    def flush(self, qname):
        while self.q.get(qname):
            it = self.q[qname].pop(0); self.forced += it.cost; self._do(it)
    def mfma(self, text, must=()):
        k0 = len(self.p.ins)
        self.p.I(text); self.n += 1
        carry = sum(i.states() for i in self.p.ins[k0:-1])
        used = 0
        for m in must:
            k = len(self.p.ins)
            if isinstance(m, str): self.p.I(m)
            else: m()
            used += sum(i.cost() for i in self.p.ins[k:])
        budget = self.cap - getattr(self, "reserve", 0); self.reserve = 0
        progress = True
        while progress:
            progress = False
            for qn in self.order:
                ql = self.q[qn]
                if ql and ql[0].at <= self.n and used + ql[0].cost <= budget and (ql[0].cond is None or ql[0].cond in self.done):
                    it = ql.pop(0); k = len(self.p.ins); self._do(it)
                    used += sum(i.cost() if i.op != "s_nop" else i.states() for i in self.p.ins[k:]); progress = True; break
        if used > self.cap: self.over += used - self.cap
```

```python
import sys
from asmlib import *
NAME = "gated_mix__linear_kernel_hedgehog__glu_gated_swiglu__prompt"
OPT = dict(stamp=0, stop=99)
for a in sys.argv[2:]:
    k, v = a.split("="); OPT[k] = int(v)

WS_H = 0; WS_KV = 0x1500000; WS_X = 0x1600000; WS_FL = 0x2000000; WS_NONCE = 0x2100000; WS_STAMP = 0x2200000
FL_KV, FL_A, FL_B, FL_C, FL_X = 0, 0x8000, 0x10000, 0x18000, 0x20000
RING = 49152; LB = 73728; WP = 162016; WN = WP + 720; ZZ = WN + 720
PHI = LB; VIMG = PHI + 20496; SS = 110592; KVZ = 147456; DUMMY = 149504; GARR = 157408
SL2 = 36864
sX, sW1, sW3, sWQ, sW2, sWO, sWS, sOUT, sDBG, sSEL, sGT = 4, 8, 12, 16, 20, 24, 28, 32, 36, 40, 44
(sw, sq, sm, sjj, sj, se, spp, sn, smp, sNonce, sL2E, sNL2E, sCol, sM0x, sM0w, sT0) = range(48, 64)
sXo = list(range(64, 72)); sWo = list(range(72, 76))
(sT1, sT2, sT3, sHst, sHld, sQs, sK2a, sK2b, sCnt, sRB, sFl, sT4, sT5, sT6) = range(76, 90)
def S(x, n=4): return f"s[{x}:{x+n-1}]"
def V(x, n=4): return f"v[{x}:{x+n-1}]" if n > 1 else f"v{x}"
vX0, vX1, vXR0, vXR1, vW0, vW1 = 1, 2, 3, 4, 5, 6
vP = [7, 8, 9, 10]; vQ, vL16, vTB, vLane, vS = 11, 12, 13, 14, 15
FR = 16; T = 40
def K(b): return 48 + 16 * b
def XF(rb, s):
    r = 4 * (4 * s + rb)
    return f"a[{r}:{r+3}]" if r < 256 else V(224 + r - 256)
MF = "v_mfma_f32_16x16x32_bf16"
p = Prog(); sc = Sched(p); I = p.I
for _q in "DEG": sc.queue(_q)
nstamp = [0]
def stamp():
    if not OPT["stamp"]: return
    k = nstamp[0]; nstamp[0] += 1
    I(f"s_memrealtime s[{90}:{91}]\ns_waitcnt lgkmcnt(0)\nv_mov_b32 v{vS}, s90\ns_lshl_b32 s92, s2, 9\ns_lshl_b32 s93, s{sw}, 7\ns_add_u32 s92, s92, s93\ns_add_u32 s92, s92, {WS_STAMP + 4*k}")
    I(f"buffer_store_dword v{vS}, off, {S(sWS)}, s92")
slow = [0]
def poll_check(vval, vaddr, soff, srd=sWS, nonzero=False):
    k = slow[0]; slow[0] += 1
    cmp = f"v_cmp_eq_u32 vcc, 0, v{vval}" if nonzero else f"v_cmp_ne_u32 vcc, s{sNonce}, v{vval}"
    I(cmp); I(f"s_cbranch_vccnz L_slow{k}"); I(f"L_back{k}:")
    p.tail += [f"L_slow{k}:", f"s_mov_b32 s{sCnt}, 40000", f"L_spin{k}:", "s_sleep 4",
               f"buffer_load_dword v{vval}, v{vaddr}, {S(srd)}, {soff} offen sc1", "s_waitcnt vmcnt(0)", cmp, "s_nop 1",
               f"s_cbranch_vccz L_back{k}", f"s_sub_u32 s{sCnt}, s{sCnt}, 1", f"s_cmp_lg_u32 s{sCnt}, 0", f"s_cbranch_scc1 L_spin{k}", f"s_branch L_back{k}"]
def finish(tag):
    if OPT["stop"] == tag:
        for qn in sc.order: sc.flush(qn)
        I("s_waitcnt vmcnt(0) lgkmcnt(0)"); stamp(); I("s_branch L_end"); out(); sys.exit(0)

def run(jobs, D, ring, wg, base=FR):
    nxt = 0; pend = []
    def reg(i): return base + 4 * (i % ring)
    def feed(upto):
        nonlocal nxt
        while nxt < len(jobs) and nxt <= upto:
            j = jobs[nxt]
            if j.get("sync"): pend.append(j["sync"])
            pend.extend(j.get("extra", [])); pend.extend(j["rd"](reg(nxt))); nxt += 1
    feed(D - 1)
    for x in pend: (I(x) if isinstance(x, str) else x())
    pend.clear()
    for f, j in enumerate(jobs):
        for nm in j.get("need", []): sc.require(nm)
        tgt = f + D
        if tgt < len(jobs) and jobs[tgt].get("sync") and nxt == tgt: tgt -= 1
        feed(tgt)
        if f % wg == 0:
            rr = [("v", reg(x) + 3) for x in range(f, min(f + wg, nxt))]
            p.wait_regs(rr)
        mfs = j["mf"](reg(f))
        for k, m in enumerate(mfs):
            left = len(mfs) - k
            n = -(-len(pend) // left) if len(pend) > 2 or len(mfs) == 2 else (1 if (k % 2 == 0 and pend) else 0)
            must = pend[:n]; del pend[:n]
            if k == len(mfs) - 1 and (f + 1) % wg == 0: sc.reserve = 1
            sc.mfma(m, must)
        if j.get("after"): j["after"]()

def tr(reg, va, off0, off1):
    return [f"ds_read_b64_tr_b16 {V(reg,2)}, v{va} offset:{off0}", f"ds_read_b64_tr_b16 {V(reg+2,2)}, v{va} offset:{off1}"]
def tile_mf(acc, s, first):
    return lambda r: [f"{MF} {V(acc+4*rb)}, {V(r)}, {XF(rb,s)}, {'0' if first else V(acc+4*rb)}" for rb in range(4)]
def barrier(vm=None, ds=True):
    def f():
        p.wait(vm=vm() if callable(vm) else vm, ds=p.nds if ds else None); I("s_barrier")
    return f

def silu_items(G, name, at, q="E", cond=None):
    seq = []
    st = lambda i: [f"v_mul_f32 v{T+i%6}, s{sNL2E}, v{G+i}", f"v_exp_f32 v{T+i%6}, v{T+i%6}", f"v_add_f32 v{T+i%6}, 1.0, v{T+i%6}",
                    f"v_rcp_f32 v{T+i%6}, v{T+i%6}", f"v_mul_f32 v{G+i}, v{G+i}, v{T+i%6}"]
    for t in range(16 + 4):
        for k in (4, 3, 2, 1, 0):
            if 0 <= t - k < 16: seq.append(st(t - k)[k])
    for i, x in enumerate(seq): sc.add(q, x, at=at, name=name if i == len(seq) - 1 else None, cond=cond if i == 0 else None)
def mul_items(G, U, TUP, half, name, at, cond=None):
    seq = []
    for rb in range(4):
        seq += [f"v_mul_f32 v{U+4*rb+r}, v{G+4*rb+r}, v{U+4*rb+r}" for r in range(4)]
        seq += [f"v_cvt_pk_bf16_f32 v{TUP+4*rb+2*half+h}, v{U+4*rb+2*h}, v{U+4*rb+2*h+1}" for h in range(2)]
    for i, x in enumerate(seq): sc.add("E", x, at=at, name=name if i == len(seq) - 1 else None, cond=cond if i == 0 else None)
last = {}
def store_items(TUP, kap, name, n=4):
    sc.add("E", f"s_add_u32 s{sT1}, s{sHst}, {kap*131072}", at=0)
    for rb in range(4):
        def f(rb=rb): last[name] = I(f"buffer_store_dwordx{n} {V(TUP+4*rb,n)}, v{vL16}, {S(sWS)}, s{sT1} offen offset:{rb*1024} sc1")
        sc.add("E", f, at=0, name=name if rb == 3 else None)
def flag_store(sreg, fl):
    I(f"v_mov_b32 v{vS}, s{sNonce}\ns_add_u32 s{sT2}, s{sreg}, {WS_FL + fl}")
    I(f"buffer_store_dword v{vS}, v0, {S(sWS)}, s{sT2} offen sc1")

def out():
    hdr = [f"; @launch grid=(256,1,1) block=(256,1,1) lds=163840",
           "; Generated by gen/gen.py (own generator): one persistent launch, 256 workgroups x 4 waves, 16x16x32 bf16 MFMA.",
           '.amdgcn_target "amdgcn-amd-amdhsa--gfx950"', ".text", f".globl {NAME}_kernel", ".p2align 8", f".type {NAME}_kernel,@function", f"{NAME}_kernel:"]
    tail = ["L_end:", "s_endpgm", '.section .rodata,"a"', ".p2align 6", f".amdhsa_kernel {NAME}_kernel", "  .amdhsa_next_free_vgpr 512",
            "  .amdhsa_next_free_sgpr 96", "  .amdhsa_accum_offset 256", "  .amdhsa_group_segment_fixed_size 0", "  .amdhsa_kernarg_size 96",
            "  .amdhsa_user_sgpr_count 2", "  .amdhsa_user_sgpr_kernarg_segment_ptr 1", "  .amdhsa_system_sgpr_workgroup_id_x 1",
            "  .amdhsa_float_denorm_mode_32 3", ".end_amdhsa_kernel"]
    open(sys.argv[1], "w").write("\n".join(hdr) + "\n" + p.text() + "\n".join(tail) + "\n")
    print(f"instrs={len(p.ins)} mfma={sc.n} autowaits={p.autowaits} nopstates={p.nops} forced={sc.forced} over={sc.over}"); print(sc.log)

I("s_cmp_ge_u32 s2, 256\ns_cbranch_scc1 L_end")
for srd, off in ((sX, 0), (sWQ, 8), (sSEL, 16), (sWO, 24), (sW1, 40), (sW3, 48), (sW2, 56), (sGT, 64), (sOUT, 72), (sDBG, 80), (sWS, 88)):
    I(f"s_load_dwordx2 s[{srd}:{srd+1}], s[0:1], {off}")
I(f"""s_getpc_b64 s[92:93]
L_pc:
s_mov_b32 s94, L_end-L_pc
s_mov_b32 s95, 0x20000
v_and_b32 v{vLane}, 63, v0
v_lshrrev_b32 v{vS}, 6, v0
v_lshlrev_b32 v{vL16}, 4, v{vLane}
v_readfirstlane_b32 s{sw}, v{vS}
s_lshr_b32 s{sT0}, s2, 3
s_lshl_b32 s{sT1}, s{sT0}, 12
v_lshlrev_b32 v{T}, 4, v0""")
I(f"buffer_load_dwordx4 {V(K(10))}, v{T}, s[92:95], s{sT1} offen")
I(f"""s_and_b32 s{sT1}, s2, 1
s_lshl_b32 s{sT1}, s{sT1}, 2
s_and_b32 s{sm}, s{sT0}, 3
s_add_u32 s{sm}, s{sm}, s{sT1}
s_bfe_u32 s{sq}, s2, 0x20001
s_lshr_b32 s{sjj}, s{sT0}, 2
s_lshl_b32 s{sj}, s{sq}, 3
s_add_u32 s{sj}, s{sj}, s{sjj}
s_and_b32 s{se}, s{sjj}, 3
s_lshr_b32 s{spp}, s{sjj}, 2
s_lshr_b32 s{sn}, s{sjj}, 1
s_and_b32 s{sT1}, s{sjj}, 1
s_lshl_b32 s{smp}, s{sm}, 1
s_add_u32 s{smp}, s{smp}, s{sT1}
s_mov_b32 s{sL2E}, 0x3fb8aa3b
s_mov_b32 s{sNL2E}, 0xbfb8aa3b""")
t0, t1, t2, t3, t4, t5 = range(T, T + 6)
I(f"""v_lshrrev_b32 v{t0}, 3, v{vLane}
v_and_b32 v{t1}, 7, v{vLane}
v_lshrrev_b32 v{t2}, 1, v{t0}
v_xor_b32 v{t3}, v{t1}, v{t2}
v_mul_u32_u24 v{t4}, 1152, v{t0}
v_lshl_add_u32 v{vX0}, v{t3}, 4, v{t4}
v_xor_b32 v{vX1}, 64, v{vX0}
v_and_b32 v{t2}, 1, v{t2}
v_lshlrev_b32 v{t2}, 1, v{t2}
v_xor_b32 v{t3}, v{t1}, v{t2}
v_mul_u32_u24 v{t4}, 9216, v{t0}
v_lshl_add_u32 v{vW0}, v{t3}, 4, v{t4}
v_xor_b32 v{vW1}, 64, v{vW0}""")
I(f"""s_lshl_b32 s{sT1}, s{sm}, 8
s_lshl_b32 s{sT2}, s{sw}, 6
s_add_u32 s{sT1}, s{sT1}, s{sT2}
s_mul_i32 s{sT1}, s{sT1}, 1152""")
for i in range(8): I(f"s_add_u32 s{sXo[i]}, s{sT1}, {4096 + 9216*i - 1024*(i&3)}")
I(f"""s_lshl_b32 s{sT1}, s{sq}, 1
s_add_u32 s{sT1}, s{sT1}, s{spp}
s_mul_i32 s{sT3}, s{sT1}, 1152
s_lshl_b32 s{sT2}, s{se}, 8
s_add_u32 s{sCol}, s{sT3}, s{sT2}
s_mul_i32 s{sT1}, s{sw}, {16*9216}
s_add_u32 s{sT1}, s{sT1}, s{sCol}""")
for i in range(4): I(f"s_add_u32 s{sWo[i]}, s{sT1}, {4096 + (i&1)*8*9216 - 1024*i}")
I(f"""s_lshl_b32 s{sM0w}, s{sw}, 12
s_lshl_b32 s{sM0x}, s{sw}, 13
s_add_u32 s{sM0x}, s{sM0x}, 16384
s_waitcnt lgkmcnt(0)""")
for srd, size, bias in ((sX, 2359296, 4096), (sW1, 5308416, 4096), (sW3, 5308416, 4096), (sWQ, 1990656, 0), (sW2, 5308416, 4096), (sWO, 663552, 4096),
                        (sWS, 268435456, 0), (sOUT, 2359296, 0), (sDBG, 256, 0), (sSEL, 20736, 0), (sGT, 1152, 0)):
    if bias: I(f"s_sub_u32 s{srd}, s{srd}, {bias}\ns_subb_u32 s{srd+1}, s{srd+1}, 0")
    I(f"s_mov_b32 s{srd+2}, {size+bias}\ns_mov_b32 s{srd+3}, 0x20000")
kbdone = {}
def p0_dma(kb):
    sl = (kb % 3) * RING; L = []
    L.append(f"s_add_u32 m0, s{sM0w}, {sl}")
    for i in range(4): L.append(f"buffer_load_dwordx4 v{vW0+(i&1)}, {S(sW1 if i < 2 else sW3)}, s{sWo[i]} offen offset:{1024*i} lds")
    L += [f"v_add_u32 v{vW0}, {64*9216}, v{vW0}", f"v_add_u32 v{vW1}, {64*9216}, v{vW1}"]
    for i in range(8):
        if i % 4 == 0: L.append(f"s_add_u32 m0, s{sM0x}, {sl + 1024*i}")
        L.append(f"buffer_load_dwordx4 v{vX0+(i&1)}, {S(sX)}, s{sXo[i]} offen offset:{1024*(i&3)} lds")
    L += [f"v_add_u32 v{vX0}, 128, v{vX0}", f"v_add_u32 v{vX1}, 128, v{vX1}"]
    return L
def mark(name):
    def f(): last[name] = p.nvm
    return f
stamp()
for kb in range(3):
    for x in p0_dma(kb): I(x)
    last[f"kb{kb}"] = p.nvm
I(f"""s_mul_i32 s{sT1}, s{sj}, 648
v_add_u32 v{t1}, 256, v0
v_min_u32 v{t1}, 323, v{t1}
v_lshlrev_b32 v{t2}, 1, v0
v_lshlrev_b32 v{t3}, 1, v{t1}""")
I(f"buffer_load_ushort v{K(9)}, v{t2}, {S(sSEL)}, s{sT1} offen\nbuffer_load_ushort v{K(9)+1}, v{t3}, {S(sSEL)}, s{sT1} offen")
I(f"""v_and_b32 v{t4}, 15, v{vLane}
v_lshrrev_b32 v{t5}, 4, v{vLane}
v_lshrrev_b32 v{vS}, 1, v{t4}
v_xor_b32 v{vS}, v{t5}, v{vS}
v_lshlrev_b32 v{vS}, 4, v{vS}
v_lshl_add_u32 v{vXR0}, v{t4}, 7, v{vS}
v_add_u32 v{vXR0}, s{sM0x}, v{vXR0}
v_xor_b32 v{vXR1}, 64, v{vXR0}
v_bfe_u32 v{vS}, v{vLane}, 3, 1
v_and_b32 v{t4}, 1, v{t5}
v_lshl_or_b32 v{vS}, v{t4}, 1, v{vS}
v_lshlrev_b32 v{vS}, 5, v{vS}
v_and_b32 v{vQ}, 3, v{vLane}
v_lshl_add_u32 v{vS}, v{vQ}, 3, v{vS}
v_bfe_u32 v{vQ}, v{vLane}, 2, 2
v_lshl_add_u32 v{vS}, v{vQ}, 7, v{vS}
v_lshl_add_u32 v{vTB}, v{t5}, 10, v{vS}
v_lshl_add_u32 v{vS}, v{t4}, 10, v{vS}
v_lshrrev_b32 v{t5}, 1, v{t5}
v_lshl_add_u32 v{vP[0]}, v{t5}, 12, v{vS}
v_xor_b32 v{vP[1]}, 32, v{vP[0]}
v_xor_b32 v{vP[2]}, 64, v{vP[0]}
v_xor_b32 v{vP[3]}, 96, v{vP[0]}
v_mul_u32_u24 v{t4}, 7282, v{vLane}
v_lshrrev_b32 v{t4}, 16, v{t4}
v_mul_u32_u24 v{t5}, 9, v{t4}
v_sub_u32 v{t5}, v{vLane}, v{t5}
v_mul_u32_u24 v{vQ}, 3456, v{t4}
v_mul_u32_u24 v{t4}, 86, v{t5}
v_lshrrev_b32 v{t4}, 8, v{t4}
v_mul_u32_u24 v{vS}, 1104, v{t4}
v_add_u32 v{vQ}, v{vQ}, v{vS}
v_lshl_add_u32 v{vQ}, v{t5}, 4, v{vQ}""")
for idx, val in ((0, K(9)), (t1, K(9) + 1)):
    I(f"""v_mul_u32_u24 v{t4}, 3641, v{idx}
v_lshrrev_b32 v{t4}, 16, v{t4}
v_lshlrev_b32 v{t4}, 2, v{t4}
v_lshl_add_u32 v{t4}, v{idx}, 1, v{t4}
v_add_u32 v{t4}, {WP}, v{t4}
v_xor_b32 v{t5}, 0x8000, v{val}
ds_write_b16 v{t4}, v{val}
ds_write_b16 v{t4}, v{t5} offset:720""")
I(f"""v_mov_b32 v{t2}, 0
v_min_u32 v{t4}, 35, v0
v_mul_u32_u24 v{t4}, 40, v{t4}
v_add_u32 v{t4}, {WP+36}, v{t4}
v_min_u32 v{t5}, 9, v0
v_lshlrev_b32 v{t5}, 2, v{t5}
v_add_u32 v{t5}, {ZZ}, v{t5}
ds_write_b32 v{t4}, v{t2}
ds_write_b32 v{t5}, v{t2}""")
I(f"""v_cmp_eq_u32 vcc, 0, v0
v_bfrev_b32 v0, 1
v_cndmask_b32 v0, v0, v{t2}, vcc
s_cmp_lg_u32 s2, 0
s_cbranch_scc1 L_nonce_done
s_mov_b32 s{sT1}, {WS_NONCE}""")
p.ins.append(Ins(f"buffer_load_dword v{t3}, off, {S(sWS)}, s{sT1} sc1")); p.ins.append(Ins("s_waitcnt vmcnt(0)"))
I(f"""v_readfirstlane_b32 s{sT2}, v{t3}
s_mul_i32 s{sT3}, s{sT2}, 0x9e3779b1
s_add_u32 s{sT3}, s{sT3}, 0x7f4a7c15
s_or_b32 s{sT3}, s{sT3}, 1
s_add_u32 s{sT4}, s{sT3}, 2
s_cmp_eq_u32 s{sT3}, s{sT2}
s_cselect_b32 s{sT3}, s{sT4}, s{sT3}
v_mov_b32 v{t3}, s{sT3}""")
p.ins.append(Ins(f"buffer_store_dword v{t3}, v0, {S(sWS)}, s{sT1} offen sc1")); p.ins.append(Ins(f"buffer_store_dword v{t3}, v0, {S(sDBG)}, 0 offen sc1"))
I("L_nonce_done:")
I(f"""s_mul_i32 s{sHst}, s{sq}, 41
s_mul_i32 s{sT1}, s{spp}, 18
s_add_u32 s{sHst}, s{sHst}, s{sT1}
s_lshl_b32 s{sT1}, s{se}, 2
s_add_u32 s{sHst}, s{sHst}, s{sT1}
s_lshl_b32 s{sHst}, s{sHst}, 7
s_lshl_b32 s{sRB}, s{sm}, 4
s_lshl_b32 s{sT1}, s{sw}, 2
s_add_u32 s{sRB}, s{sRB}, s{sT1}
s_add_u32 s{sHst}, s{sHst}, s{sRB}
s_lshl_b32 s{sHst}, s{sHst}, 10
s_cmp_lt_u32 s{sw}, 2
s_cselect_b32 s{sSEL}, s{sW1}, s{sW3}
s_cselect_b32 s{sSEL+1}, s{sW1+1}, s{sW3+1}
s_mov_b32 s{sSEL+2}, {5308416+4096}""")

def strip_dma(srd, col, adv, lo, hi):
    L = []
    for u in range(lo, hi):
        if u == 0:
            L += [f"v_subrev_u32 v{vW0}, {adv}, v{vW0}", f"v_subrev_u32 v{vW1}, {adv}, v{vW1}", f"s_mul_i32 s{sT3}, s{sw}, {4*73728}", f"s_add_u32 s{sT3}, s{sT3}, s{sCol}"]
            L += [f"s_add_u32 s{sWo[i]}, s{sT3}, {4096 + col + 73728*i - 1024*i}" for i in range(4)]
        if u < 4:
            L.append(f"s_add_u32 m0, s{sM0w}, {16384*u}")
        else:
            L += [f"s_mul_i32 s{sT3}, s{sw}, {2*73728}", f"s_add_u32 s{sT3}, s{sT3}, s{sCol}"]
            L += [f"s_add_u32 s{sWo[i]}, s{sT3}, {4096 + col + 73728*i - 1024*i}" for i in range(2)]
            L += [f"s_lshl_b32 s{sT3}, s{sw}, 11", f"s_add_u32 m0, s{sT3}, 65536"]
        for i in range(4 if u < 4 else 2): L.append(f"buffer_load_dwordx4 v{vW0+(i&1)}, {S(srd)}, s{sWo[i]} offen offset:{1024*i} lds")
        if u < 4: L += [f"v_add_u32 v{vW0}, {16*73728}, v{vW0}", f"v_add_u32 v{vW1}, {16*73728}, v{vW1}"]
    return L
def spread(L, n0, span, name):
    for i, x in enumerate(L): sc.add("D", x, at=n0 + (i * span) // len(L))
    sc.add("D", mark(name), at=0, cost=0, name=name)
jobs = []
for kb in range(9):
    adv = RING if kb % 3 else -2 * RING
    for s1 in range(2):
        for t in range(8):
            M, ct = t >> 2, t & 3; s = 2 * kb + s1
            j = dict(rd=(lambda r, ct=ct, o=s1*8192 + M*2048: tr(r, vP[ct], o, o + 512)), mf=tile_mf(K(t), s, kb == 0 and s1 == 0))
            if s1 == 0 and t == 0:
                def sync(kb=kb, adv=adv):
                    sc.require(f"kb{kb}") if kb > 2 else None
                    p.wait(vm=last[f"kb{kb}"], ds=p.nds); I("s_barrier")
                    if kb:
                        for r in vP + [vXR0, vXR1]: I(f"v_add_u32 v{r}, {adv & 0xffffffff}, v{r}")
                    if 1 <= kb <= 6: spread(p0_dma(kb + 2), sc.n + 6, 44, f"kb{kb+2}")
                    if kb == 7: spread(strip_dma(sW1, 128, 9*64*9216, 0, 3), sc.n + 6, 50, "G1a")
                    if kb == 8: spread(strip_dma(sW1, 128, 0, 3, 5), sc.n + 6, 40, "G1")
                    if kb == 5: last["nonce"] = I(f"buffer_load_dword v{vS}, off, {S(sDBG)}, 0 sc1")
                j["sync"] = sync
                j["extra"] = [f"ds_read_b128 {XF(rb, s)}, v{vXR0} offset:{rb*2048}" for rb in range(4)]
            if s1 == 0 and t in (2, 3): j["extra"] = [f"ds_read_b128 {XF(rb, s+1)}, v{vXR1} offset:{rb*2048}" for rb in range(2*t - 4, 2*t - 2)]
            if kb == 6 and s1 == 0 and t == 0:
                def f():
                    I(f"v_mov_b32 v{T+7}, 0"); poll_check(vS, T + 7, "0", sDBG, nonzero=True); I(f"v_readfirstlane_b32 s{sNonce}, v{vS}")
                j["after"] = f
            jobs.append(j)
def strip_tile(ct, acc, sync=None, need=(), after=None):
    L = []
    for s in range(18):
        va = vP[(ct & 1) * 2 + (s >= 9)]; o = (s % 9) * 4096
        j = dict(rd=(lambda r, va=va, o=o: tr(r, va, o, o + 512)), mf=tile_mf(acc, s, s == 0))
        if s == 0:
            j["extra"] = [f"v_xor_b32 v{va}, {32*ct}, v{vTB}", f"v_add_u32 v{va+1}, 36864, v{va}"]; j["need"] = list(need)
            if sync: j["sync"] = sync
        if s == 17 and after: j["after"] = after
        L.append(j)
    return L
def e0():
    at = sc.n + 3
    for ct in range(4):
        silu_items(K(ct), f"s0_{ct}", at); mul_items(K(ct), K(4 + ct), K(ct & 2), ct & 1, f"e0_{ct}", at)
        if ct & 1: store_items(K(ct & 2), ct >> 1, f"st0_{ct>>1}")
jobs[-1]["after"] = e0
def g1_sync():
    stamp(); sc.require("G1"); p.wait(vm=last["G1"], ds=p.nds); I("s_barrier")
    L = [f"s_mul_i32 s{sQs}, s{sj}, 36", f"s_mul_i32 s{sT3}, s{sw}, 24192", f"s_add_u32 s{sQs}, s{sQs}, s{sT3}", f"s_mul_i32 s{sT3}, s{sw}, 1008", f"s_add_u32 m0, s{sT3}, {LB}"]
    for u in range(21):
        L.append(f"buffer_load_dwordx4 v{vQ}, {S(sWQ)}, s{sQs} offen lds")
        if u < 19: L += [f"s_add_u32 s{sQs}, s{sQs}, 96768", "s_add_u32 m0, m0, 4032"]
        if u == 19: L += [f"s_min_u32 s{sT3}, s{sw}, 2", f"s_mul_i32 s{sT4}, s{sT3}, 1008", f"s_add_u32 m0, s{sT4}, {LB + 80*1008}", f"s_mul_i32 s{sT3}, s{sT3}, 24192",
                          f"s_mul_i32 s{sQs}, s{sj}, 36", f"s_add_u32 s{sQs}, s{sQs}, s{sT3}", f"s_add_u32 s{sQs}, s{sQs}, {20*96768}"]
    L += [f"v_lshl_add_u32 v{vXR1}, s{sw}, 6, v{vLane}", f"v_lshlrev_b32 v{vXR1}, 1, v{vXR1}",
          f"buffer_load_ushort v{vX0}, v{vXR1}, {S(sGT)}, 0 offen", f"buffer_load_ushort v{vX1}, v{vXR1}, {S(sGT)}, 0 offen offset:512",
          f"v_min_u32 v{vXR1}, 126, v{vXR1}", f"buffer_load_ushort v{vXR0}, v{vXR1}, {S(sGT)}, 0 offen offset:1024"]
    spread(L, sc.n + 6, 230, "QKV")
GB = [K(8), K(9), K(10), K(4)]
for ct in range(4):
    jobs += strip_tile(ct, GB[ct], sync=g1_sync if ct == 0 else None, need=["e0_0"] if ct == 3 else [],
                       after=(lambda: [silu_items(GB[c], f"s1_{c}", sc.n + 3, "G", "s0_3") for c in range(4)]) if ct == 3 else None)
QB = [K(5), K(1), K(0), K(6)]
def qkv_sync():
    stamp(); sc.require("QKV"); p.wait(vm=last["QKV"], ds=p.nds); I("s_barrier")
    a = T + 6; z = T + 7
    I(f"""v_lshl_add_u32 v{a}, s{sw}, 6, v{vLane}
v_mov_b32 v{z}, 0
v_mul_u32_u24 v{vXR1}, 144, v{a}
v_min_u32 v{a}, 63, v{a}
v_add_u32 v{vXR1}, {LB+136}, v{vXR1}
v_mul_u32_u24 v{a}, 144, v{a}
ds_write2_b32 v{vXR1}, v{vX0}, v{z} offset1:1
v_add_u32 v{vXR1}, {256*144}, v{vXR1}
v_add_u32 v{a}, {LB+136+512*144}, v{a}
ds_write2_b32 v{vXR1}, v{vX1}, v{z} offset1:1
ds_write2_b32 v{a}, v{vXR0}, v{z} offset1:1
v_lshrrev_b32 v{a}, 4, v{vLane}
v_bfe_u32 v{z}, v{vLane}, 2, 2
v_lshl_add_u32 v{a}, v{a}, 3, v{z}
v_mul_u32_u24 v{a}, 144, v{a}
v_and_b32 v{z}, 3, v{vLane}
v_add_u32 v{a}, {LB}, v{a}
v_lshl_add_u32 v{vP[0]}, v{z}, 3, v{a}
v_add_u32 v{vP[1]}, {9*4608}, v{vP[0]}
v_mul_u32_u24 v{vP[2]}, 48, v{z}
v_min_u32 v{vP[2]}, 104, v{vP[2]}
v_add3_u32 v{vP[2]}, v{vP[2]}, v{a}, 32
v_add_u32 v{vP[3]}, {9*4608}, v{vP[2]}""")
    spread(strip_dma(sW3, 128, 4*16*73728, 0, 5), sc.n + 6, 200, "U1")
for seg in range(4):
    for s in range(18):
        va = vP[(2 if seg == 3 else 0) + (s >= 9)]; o = (s % 9) * 4608 + (48 * seg if seg < 3 else 0)
        j = dict(rd=(lambda r, va=va, o=o: tr(r, va, o, o + 576)), mf=tile_mf(QB[seg], s, s == 0))
        if s == 0:
            j["need"] = [["e0_1"], [], ["st0_0"], ["e0_2"]][seg]
            if seg == 0: j["sync"] = qkv_sync
            if seg == 3: j["sync"] = barrier()
        jobs.append(j)
run(jobs, 4, 6, 2)
sc.require("st0_1")
finish(1)

stamp()
a0, a1, a2, a3, a4, a5 = vX0, vX1, vXR0, vXR1, T + 6, T + 7
WA = [K(2) + 4*i for i in range(8)] + [K(7), K(7) + 4]
F = [48, 58, 68, 128]; PB = 140; BQ = [FR + 6*rb for rb in range(4)]
g_, r4_, c4_ = vP[0], vP[1], vP[2]
I(f"""v_lshrrev_b32 v{g_}, 4, v{vLane}
v_bfe_u32 v{r4_}, v{vLane}, 2, 2
v_and_b32 v{c4_}, 3, v{vLane}
v_and_b32 v{a4}, 1, v{c4_}
v_mul_u32_u24 v{a4}, 720, v{a4}
v_add_u32 v{a4}, {WP}, v{a4}
v_lshl_add_u32 v{a5}, v{g_}, 2, v{r4_}
v_mul_u32_u24 v{a5}, 40, v{a5}
v_add_u32 v{a5}, v{a4}, v{a5}
v_mov_b32 v{vP[3]}, {ZZ}
v_cmp_gt_u32 vcc, 2, v{c4_}
v_cndmask_b32 v{a0}, v{vP[3]}, v{a5}, vcc
v_cndmask_b32 v{a3}, v{a5}, v{vP[3]}, vcc
v_mul_u32_u24 v{a5}, 40, v{r4_}
v_add_u32 v{a4}, 640, v{a4}
v_add_u32 v{a5}, v{a5}, v{a4}
v_and_b32 v{a4}, 0x3a, v{vLane}
v_cmp_eq_u32 vcc, 0, v{a4}
v_cndmask_b32 v{a1}, v{vP[3]}, v{a5}, vcc
v_cmp_eq_u32 vcc, 0x12, v{a4}
v_cndmask_b32 v{a2}, v{vP[3]}, v{a5}, vcc""")
for t in range(5):
    I(f"""ds_read_b64_tr_b16 {V(WA[2*t],2)}, v{a0} offset:{8*t}
ds_read_b64_tr_b16 {V(WA[2*t]+2,2)}, v{a1} offset:{8*t}
ds_read_b64_tr_b16 {V(WA[2*t+1],2)}, v{a2} offset:{8*t}
ds_read_b64_tr_b16 {V(WA[2*t+1]+2,2)}, v{a3} offset:{8*t}""")
I(f"""v_and_b32 v{a4}, 15, v{vLane}
v_lshl_add_u32 v{a4}, s{sw}, 6, v{a4}
v_mov_b32 v{vP[3]}, {DUMMY}
v_mul_u32_u24 v{a5}, 40, v{a4}
v_add_u32 v{a5}, {VIMG}, v{a5}
v_lshl_add_u32 v{a0}, v{g_}, 3, v{a5}
v_add_u32 v{a5}, 32, v{a5}
v_cmp_eq_u32 vcc, 2, v{g_}
v_cndmask_b32 v{a1}, v{vP[3]}, v{a5}, vcc
v_lshlrev_b32 v{a5}, 2, v{a4}
v_add_u32 v{a5}, {GARR}, v{a5}
v_cmp_eq_u32 vcc, 3, v{g_}
v_cndmask_b32 v{a2}, v{vP[3]}, v{a5}, vcc
v_mul_u32_u24 v{a5}, 80, v{a4}
v_mul_u32_u24 v{a4}, 40, v{g_}
v_add_u32 v{a5}, {PHI-80}, v{a5}
v_add_u32 v{a5}, v{a5}, v{a4}
v_cmp_lt_u32 vcc, 1, v{g_}
v_cndmask_b32 v{a3}, v{vP[3]}, v{a5}, vcc""")
q_, k_, v_, r_ = QB
cv = lambda d, s: f"v_cvt_pk_bf16_f32 v{d}, v{s}, v{s+1}"
for rb in range(4):
    b = BQ[rb]; o = 4*rb
    I("\n".join([cv(b, q_+o), cv(b+1, q_+o+2), cv(b+2, r_+o), cv(b+3, r_+o+2), cv(b+4, k_+o), cv(b+5, k_+o+2), cv(v_+o, v_+o), cv(v_+o+1, v_+o+2),
                 f"v_mul_f32 v{r_+o}, s{sNL2E}, v{r_+o}", f"v_mov_b32 v{v_+o+2}, v{b+2}", f"v_exp_f32 v{r_+o}, v{r_+o}", f"v_mov_b32 v{v_+o+3}, 0x3f80"]))
for rb in range(4): I(f"v_add_f32 v{r_+4*rb}, 1.0, v{r_+4*rb}")
for rb in range(4): I(f"v_rcp_f32 v{r_+4*rb}, v{r_+4*rb}")
p.wait(ds=p.nds); I("s_barrier")
for rb in range(4):
    o = 4*rb
    I(f"ds_write_b64 v{a0}, {V(v_+o,2)} offset:{rb*640}\nds_write_b64 v{a1}, {V(v_+o+2,2)} offset:{rb*640}\nds_write_b32 v{a2}, v{r_+o} offset:{rb*64}")
sc.require("U1")
I(f"""v_lshrrev_b32 v{a4}, 1, v{vLane}
v_and_b32 v{a5}, 0x13, v{a4}
v_bfe_u32 v{vW0}, v{a4}, 2, 1
v_lshl_or_b32 v{a5}, v{vW0}, 3, v{a5}
v_bfe_u32 v{vW0}, v{a4}, 3, 1
v_lshl_or_b32 v{a5}, v{vW0}, 2, v{a5}
v_mul_u32_u24 v{a5}, 9216, v{a5}
v_and_b32 v{a4}, 1, v{vLane}""")
I(f"""v_lshl_add_u32 v{vW0}, v{a4}, 4, v{a5}
s_mul_i32 s{sT3}, s{se}, 224
s_sub_u32 s{sT3}, s{sCol}, s{sT3}
s_and_b32 s{sT4}, s{sw}, 1
s_mul_i32 s{sT4}, s{sT4}, {9*32*9216}
s_add_u32 s{sT3}, s{sT3}, s{sT4}
s_add_u32 s{sWo[0]}, s{sT3}, {4096+1024}
s_mul_i32 s{sT3}, s{sw}, 9216
s_add_u32 s{sWo[1]}, s{sT3}, {SS}""")
SD = []
for u in range(9):
    SD += [f"s_add_u32 m0, s{sWo[1]}, {1024*u}", f"buffer_load_dwordx4 v{vW0}, {S(sSEL)}, s{sWo[0]} offen lds", f"v_add_u32 v{vW0}, {32*9216}, v{vW0}"]
for rb in range(4):
    for ks in range(2):
        for t in range(5):
            sc.mfma(f"{MF} {V(PB+4*t)}, {V(WA[2*t+ks])}, {V(BQ[rb]+2*ks)}, {V(PB+4*t) if ks else 0}")
    if rb == 0: I(f"v_mov_b32 v{F[0]+9}, 0\nv_mov_b32 v{F[1]+9}, 0\nv_mov_b32 v{F[2]+9}, 0\nv_mov_b32 v{F[2]+10}, 0\nv_mov_b32 v{F[2]+11}, 0\nv_mov_b32 v{F[3]+9}, 0\nv_mov_b32 v{F[3]+10}, 0\nv_mov_b32 v{F[3]+11}, 0")
    elif SD:
        for x in SD[:9]: I(x)
        del SD[:9]
    I(f"v_max3_f32 v{a4}, v{PB}, v{PB+1}, v{PB+2}\nv_max3_f32 v{a5}, v{PB+3}, v{PB+4}, v{PB+5}")
    for i in range(6, 18, 4): I(f"v_max3_f32 v{a4}, v{a4}, v{PB+i}, v{PB+i+1}\nv_max3_f32 v{a5}, v{a5}, v{PB+i+2}, v{PB+i+3}")
    I(f"v_max_f32 v{a4}, v{a4}, v{a5}\nv_mul_f32 v{a4}, s{sNL2E}, v{a4}")
    for i in range(18): I(f"v_fmamk_f32 v{PB+i}, v{PB+i}, 0x3fb8aa3b, v{a4}")
    for i in range(18): I(f"v_exp_f32 v{PB+i}, v{PB+i}")
    I(f"v_add_f32 v{a4}, v{PB}, v{PB+1}\nv_add_f32 v{a5}, v{PB+2}, v{PB+3}")
    for i in range(4, 18, 2): I(f"v_add_f32 v{a4}, v{a4}, v{PB+i}\nv_add_f32 v{a5}, v{a5}, v{PB+i+1}")
    I(f"v_add_f32 v{a4}, v{a4}, v{a5}\nv_rcp_f32 v{a4}, v{a4}")
    for i in range(18): I(f"v_mul_f32 v{PB+i}, v{PB+i}, v{a4}")
    for i in range(9): I(cv(F[rb]+i, PB+2*i))
    for u in range(5): I(f"ds_write_b64 v{a3}, {V(F[rb]+2*u,2)} offset:{rb*1280 + 8*u}")
last["S"] = p.nvm
I(f"""v_lshl_add_u32 v{a4}, v{g_}, 3, v{r4_}
v_mul_u32_u24 v{a0}, 80, v{a4}
v_lshl_add_u32 v{a0}, v{c4_}, 3, v{a0}
v_lshl_add_u32 v{a0}, s{sw}, 5, v{a0}
v_add_u32 v{a0}, {PHI}, v{a0}
v_mul_u32_u24 v{a1}, 40, v{a4}
v_lshl_add_u32 v{a1}, v{c4_}, 3, v{a1}
v_add_u32 v{a1}, {VIMG}, v{a1}
v_and_b32 v{a4}, 15, v{vLane}
v_mul_u32_u24 v{a2}, 160, v{a4}
v_lshl_add_u32 v{a5}, s{sw}, 2, v{g_}
v_lshl_add_u32 v{a2}, v{a5}, 4, v{a2}
v_bfrev_b32 v{vP[3]}, 1
v_cmp_gt_u32 vcc, 10, v{a5}
v_cndmask_b32 v{a2}, v{vP[3]}, v{a2}, vcc
v_cmp_gt_u32 vcc, 4, v{a4}
v_cndmask_b32 v{a3}, v{vP[3]}, v{a2}, vcc
s_lshl_b32 s{sT2}, s{sj}, 3
s_add_u32 s{sT2}, s{sT2}, s{sm}
s_lshl_b32 s{sT2}, s{sT2}, 12
s_add_u32 s{sT4}, s{sT2}, {WS_KV}""")
p.wait(vm=max(last["st0_1"], last["U1"]), ds=p.nds); I("s_barrier")
I(f"s_lshl_b32 s{sFl}, s{sm}, 2\ns_add_u32 s{sFl}, s{sFl}, s{sq}\ns_lshl_b32 s{sFl}, s{sFl}, 7\ns_lshl_b32 s{sT3}, s{sjj}, 2\ns_add_u32 s{sFl}, s{sFl}, s{sT3}")
flag_store(sFl, FL_A)
DK = K(7) + 8
def kv_rd(ks, r): return tr(r, a0, ks*2560, ks*2560 + 320) + tr(r + 4, a1, ks*1280, ks*1280 + 160) + tr(r + 8, a1, ks*1280 + 32, ks*1280 + 192)
KR = [FR, FR + 12, PB]
for x in kv_rd(0, KR[0]) + kv_rd(1, KR[1]): I(x)
for ks in range(8):
    r = KR[ks % 3]; nx = kv_rd(ks + 2, KR[(ks + 2) % 3]) if ks < 6 else []
    sc.mfma(f"{MF} {V(DK)}, {V(r)}, {V(r+4)}, {V(DK) if ks else 0}", nx[:3])
    sc.mfma(f"{MF} {V(DK+4)}, {V(r)}, {V(r+8)}, {V(DK+4) if ks else 0}", nx[3:])
finish(2)

vV = list(range(140, 149)); vK = [149, 150, 151, 152]; vK8 = 153; vPoll = 154; vPA = 155; vKO = 156
UB = [K(2), K(3)]
def kv_store():
    I(f"buffer_store_dwordx4 {V(DK)}, v{a2}, {S(sWS)}, s{sT4} offen sc1")
    last["kv"] = I(f"buffer_store_dwordx4 {V(DK+4)}, v{a3}, {S(sWS)}, s{sT4} offen offset:2560 sc1")
def u1_sync():
    stamp()
def k2_setup():
    L = []
    for i in range(9):
        L += [f"v_add_u32 v{T+6}, {64*i}, v{vLane}", f"v_mul_u32_u24 v{T+7}, 3641, v{T+6}", f"v_lshrrev_b32 v{T+7}, 16, v{T+7}",
              f"v_mul_u32_u24 v{T+7}, 864, v{T+7}", f"v_lshl_add_u32 v{vV[i]}, v{T+6}, 4, v{T+7}"]
        if i & 3: L.append(f"v_subrev_u32 v{vV[i]}, {1024*(i&3)}, v{vV[i]}")
        L.append(f"v_add_u32 v{vV[i]}, 4096, v{vV[i]}")
    L += [f"v_and_b32 v{vPA}, 7, v{vLane}", f"v_lshlrev_b32 v{vPA}, 2, v{vPA}",
          f"s_mul_i32 s{sK2a}, s{sq}, {1152*1152}", f"s_mul_i32 s{sT3}, s{sn}, 288", f"s_add_u32 s{sK2a}, s{sK2a}, s{sT3}",
          f"s_lshr_b32 s{sT3}, s{sw}, 1", f"s_and_b32 s{sT6}, s{sw}, 1", f"s_mul_i32 s{sK2b}, s{sT3}, 18", f"s_add_u32 s{sK2b}, s{sK2b}, s{sT6}",
          f"s_mul_i32 s{sK2b}, s{sK2b}, 36864", f"s_add_u32 s{sK2b}, s{sK2b}, s{sK2a}",
          f"s_lshl_b32 s{sT3}, s{sT3}, 2", f"s_add_u32 s{sT3}, s{sT3}, s{sT6}", f"s_mul_i32 s{sT3}, s{sT3}, 36864", f"s_add_u32 s{sK2a}, s{sK2a}, s{sT3}",
          f"s_mul_i32 s{sM0w}, s{sw}, 9216",
          f"s_mul_i32 s{sHld}, s{sq}, {41*128}", f"s_lshl_b32 s{sT3}, s{smp}, 3", f"s_add_u32 s{sHld}, s{sHld}, s{sT3}", f"s_lshl_b32 s{sT3}, s{sw}, 1",
          f"s_add_u32 s{sHld}, s{sHld}, s{sT3}", f"s_lshl_b32 s{sHld}, s{sHld}, 10"]
    return L
def kap_of(G, w):
    if G < 8: return 18*((G >> 1) & 1) + 2*(4*(G & 1) + (G >> 2) + 2*(w >> 1)) + (w & 1)
    return 18*(w >> 1) + 16 + (w & 1)
def w2_dma(G):
    L = []
    if G < 8:   L.append(f"s_add_u32 s{sT3}, s{sK2a}, {kap_of(G,0)*36864}"); srd = sW2
    elif G == 8: L.append(f"s_add_u32 s{sT3}, s{sK2b}, {16*36864}"); srd = sW2
    else:
        srd = sWO
        if G == 9: L += [f"s_mul_i32 s{sT3}, s{sq}, {144*1152}", f"s_mul_i32 s{sT6}, s{sw}, 36864", f"s_add_u32 s{sT3}, s{sT3}, s{sT6}",
                         f"s_mul_i32 s{sK2b}, s{sn}, 288", f"s_add_u32 s{sT3}, s{sT3}, s{sK2b}"]
        else:
            L += [f"s_mul_i32 s{sT3}, s{sq}, {144*1152}", f"s_add_u32 s{sT3}, s{sT3}, {128*1152+4096}", f"s_add_u32 s{sT3}, s{sT3}, s{sK2b}"]
            for i in range(2):
                L += [f"v_lshl_add_u32 v122, s{sw}, 7, v{vLane}", f"v_add_u32 v122, {64*i}, v122", f"v_mul_u32_u24 v123, 3641, v122",
                      f"v_lshrrev_b32 v123, 16, v123", f"v_mul_u32_u24 v123, 864, v123", f"v_lshl_add_u32 v122, v122, 4, v123",
                      f"v_add_u32 v122, s{sT3}, v122", f"s_lshl_b32 s{sT6}, s{sw}, 11", f"s_add_u32 m0, s{sT6}, {2*SL2 + 1024*i}",
                      f"buffer_load_dwordx4 v122, {S(sWO)}, 0 offen lds"]
            return L
    for i in range(9):
        if i % 4 == 0: L.append(f"s_add_u32 m0, s{sM0w}, {(G % 4)*SL2 + 1024*i}")
        L.append(f"buffer_load_dwordx4 v{vV[i]}, {S(srd)}, s{sT3} offen offset:{1024*(i&3)} lds")
    return L
def HF(u, rb):
    if u < 32: r = 8*u + 4*rb; return f"a[{r}:{r+3}]"
    if u < 36: return V(224 + 8*(u - 32) + 4*rb)
    return V(176 + 8*(u - 36) + 4*rb)
def h_loads(us):
    L = []
    for u in us:
        kap = kap_of(u >> 2, u & 3) if u < 36 else u
        L.append(f"s_add_u32 s{sT0}, s{sHld}, {kap*131072}")
        L += [f"buffer_load_dwordx4 {HF(u,rb)}, v{vL16}, {S(sWS)}, s{sT0} offen offset:{1024*rb} sc1" for rb in range(2)]
    return L
def poll_issue(sreg, fl, q="D", at=None):
    sc.add(q, f"s_add_u32 s{sQs}, s{sreg}, {WS_FL + fl}", at=at); sc.add(q, f"buffer_load_dword v{vPoll}, v{vPA}, {S(sWS)}, s{sQs} offen sc1", at=at)
def poll_item(name, q="D", at=None):
    sc.add(q, lambda: poll_check(vPoll, vPA, f"s{sQs}"), at=at, cost=2, name=name)
jobs = []
def e1(ct):
    def f():
        mul_items(GB[ct], UB[ct & 1], GB[ct & 2], ct & 1, f"e1_{ct}", sc.n + 3, cond=f"s1_{ct}")
        if ct & 1: store_items(GB[ct & 2], 2 + (ct >> 1), f"st1_{ct>>1}")
        if ct == 0:
            spread(k2_setup(), sc.n, 60, "k2setup")
    return f
def kvflag_sync():
    p.wait(vm=last["kv"]); I("s_barrier"); I(f"s_lshl_b32 s{sT3}, s{sj}, 7\ns_lshl_b32 s{sT4}, s{sm}, 2\ns_add_u32 s{sT3}, s{sT3}, s{sT4}"); flag_store(sT3, FL_KV)
for ct in range(4):
    tl = strip_tile(ct, UB[ct & 1], sync=u1_sync if ct == 0 else None, need=[f"e1_{ct-2}"] if ct >= 2 else [], after=e1(ct))
    if ct == 0: tl[1]["after"] = kv_store
    if ct == 1: tl[6]["sync"] = kvflag_sync
    jobs += tl
KVL = K(8)
def s_sync():
    stamp(); p.wait(vm=last["S"], ds=p.nds); I("s_barrier")
    sc.require("k2setup")
    I(f"""v_lshrrev_b32 v{T+6}, 5, v{vLane}
v_lshlrev_b32 v{T+6}, 9, v{T+6}
v_and_b32 v{T+7}, 31, v{vLane}
v_lshl_add_u32 v{T+6}, v{T+7}, 3, v{T+6}
v_add_u32 v{vP[0]}, {SS}, v{T+6}
s_lshl_b32 s{sT4}, s{sj}, 7""")
    n0 = sc.n
    poll_issue(sT4, FL_KV, at=n0)
    spread(w2_dma(0), n0 + 2, 24, "w0")
    poll_item("pkv", at=n0 + 30)
    L = [f"v_lshl_add_u32 v{vKO}, s{sw}, 6, v{vLane}", f"v_min_u32 v{vKO}, 199, v{vKO}", f"v_lshlrev_b32 v{vKO}, 4, v{vKO}", f"s_lshl_b32 s{sT6}, s{sj}, 15", f"s_add_u32 s{sT6}, s{sT6}, {WS_KV}"]
    for mm in range(8): L += [f"buffer_load_dwordx4 {V(KVL+4*mm)}, v{vKO}, {S(sWS)}, s{sT6} offen sc1", f"s_add_u32 s{sT6}, s{sT6}, 4096"]
    sc.add("D", lambda: sc.require("st1_0"), at=0, cost=0)
    spread(L, n0 + 32, 14, "kvl")
    sc.add("D", f"s_and_b32 s{sT4}, s{sFl}, 0xffffff80", at=0)
    poll_issue(sT4, FL_A, at=0)
    spread(w2_dma(1), n0 + 48, 24, "w1")
    poll_item("pA", at=n0 + 74)
def s_tile(M, acc, **kw):
    L = []
    for s in range(18):
        o = M*18432 + s*1024
        j = dict(rd=(lambda r, o=o: tr(r, vP[0], o, o + 256)), mf=tile_mf(acc, s, s == 0))
        if s == 0: j.update(kw)
        L.append(j)
    return L
tg = s_tile(0, K(7), sync=s_sync); tg[17]["after"] = lambda: silu_items(K(7), "sS", sc.n + 3, "G")
tu = s_tile(1, UB[0], need=["e1_2"])
def hl(s):
    def f():
        for x in h_loads([2*s, 2*s + 1]): sc.add("D", x, at=0)
    return f
for s in range(8): tu[s + 1]["after"] = hl(s)
def kvsum():
    L = []
    for mm in range(1, 8): L += [f"v_add_f32 v{KVL+r}, v{KVL+r}, v{KVL+4*mm+r}" for r in range(4)]
    L += [cv(KVL, KVL), cv(KVL + 1, KVL + 2), f"v_lshrrev_b32 v{vKO}, 1, v{vKO}", f"v_add_u32 v{vKO}, {KVZ}, v{vKO}", f"ds_write_b64 v{vKO}, {V(KVL,2)}"]
    for i, x in enumerate(L): sc.add("E", x, at=0, name="kvz" if i == len(L) - 1 else None)
tu[9]["after"] = kvsum
jobs += tg + tu
run(jobs, 4, 6, 2)
finish(3)

stamp()
for qn in "DG": sc.flush(qn)
sc.require("st1_1"); sc.require("kvz")
p.wait(vm=last["st1_1"], ds=p.nds); I("s_barrier")
flag_store(sFl, FL_B)
AO = K(8); DO = [K(3), K(3) + 8, K(4), K(4) + 8]; GV = K(10)
I(f"""v_lshrrev_b32 v{g_}, 4, v{vLane}
v_and_b32 v{a4}, 15, v{vLane}
v_mul_u32_u24 v{a5}, 40, v{g_}
v_add_u32 v{a5}, {KVZ}, v{a5}
v_mul_u32_u24 v{a0}, 80, v{a4}
v_add_u32 v{a0}, v{a0}, v{a5}
v_and_b32 v{a1}, 3, v{vLane}
v_lshlrev_b32 v{a1}, 3, v{a1}
v_mov_b32 v{a2}, 0x13111012
v_lshrrev_b32 v{a1}, v{a1}, v{a2}
v_and_b32 v{a1}, 0xff, v{a1}
v_mul_u32_u24 v{a1}, 80, v{a1}
v_add_u32 v{a1}, v{a1}, v{a5}
v_mov_b32 v{a2}, {ZZ}
v_cmp_gt_u32 vcc, 2, v{g_}
v_cndmask_b32 v{a0}, v{a2}, v{a0}, vcc
v_cndmask_b32 v{a1}, v{a2}, v{a1}, vcc
v_lshl_add_u32 v{a3}, s{sw}, 6, v{a4}
v_lshlrev_b32 v{a3}, 2, v{a3}
v_add_u32 v{a3}, {GARR}, v{a3}""")
for tt, va in ((0, a0), (1, a1)):
    for u in range(5): I(f"ds_read_b64 {V(AO+12*tt+2*u,2)}, v{va} offset:{8*u}")
    I(f"v_mov_b32 v{AO+12*tt+10}, 0\nv_mov_b32 v{AO+12*tt+11}, 0")
for rb in range(4): I(f"ds_read_b32 v{GV+rb}, v{a3} offset:{64*rb}")
for x in w2_dma(2): I(x)
last["w2"] = p.nvm
I(f"""s_lshr_b32 s{sT3}, s{se}, 1
s_lshl_b32 s{sT4}, s{se}, 2
s_sub_u32 s{sT3}, s{sT3}, s{sT4}
s_add_u32 s{sT3}, s{sT3}, 16
s_lshl_b32 s{sT3}, s{sT3}, 17
s_add_u32 s{sT1}, s{sHst}, s{sT3}
s_and_b32 s{sT3}, s{se}, 1
s_lshl_b32 s{sT3}, s{sT3}, 3
s_add_u32 s{sT1}, s{sT1}, s{sT3}""")
mul_items(K(7), UB[0], K(7), 0, "eS", 0)
for rb in range(4): sc.add("E", f"buffer_store_dwordx2 {V(K(7)+4*rb,2)}, v{vL16}, {S(sWS)}, s{sT1} offen offset:{rb*1024} sc1", at=0)
for ks in range(3):
    for rb in range(4):
        for tt in range(2):
            sc.mfma(f"{MF} {V(DO[rb]+4*tt)}, {V(AO+12*tt+4*ks)}, {V(F[rb]+4*ks)}, {V(DO[rb]+4*tt) if ks else 0}")
sc.flush("E")
I(f"""s_mul_i32 s{sT3}, s{sq}, 41
s_lshr_b32 s{sT4}, s{sjj}, 1
s_add_u32 s{sT3}, s{sT3}, 40
s_lshl_b32 s{sT3}, s{sT3}, 7
s_add_u32 s{sT3}, s{sT3}, s{sRB}
s_lshl_b32 s{sT3}, s{sT3}, 10
s_and_b32 s{sT2}, s{sjj}, 1
s_lshl_b32 s{sT2}, s{sT2}, 3
s_add_u32 s{sT2}, s{sT3}, s{sT2}
s_sub_u32 s{sT1}, 4, s{sT4}
s_lshl_b32 s{sT1}, s{sT1}, 17
s_sub_u32 s{sT1}, s{sT2}, s{sT1}
v_bfrev_b32 v{a2}, 1
v_cmp_eq_u32 vcc, s{sT4}, v{g_}
v_cndmask_b32 v{a2}, v{a2}, v{vL16}, vcc""")
for rb in range(4): I(f"v_add_f32 v{DO[rb]+4}, 0x358637bd, v{DO[rb]+4}")
for rb in range(4): I(f"v_rcp_f32 v{DO[rb]+4}, v{DO[rb]+4}")
for rb in range(4): I(f"v_mul_f32 v{DO[rb]+4}, v{DO[rb]+4}, v{GV+rb}")
for rb in range(4):
    d = DO[rb]
    for r in (0, 1, 2, 3, 5, 6): I(f"v_mul_f32 v{d+r}, v{d+r}, v{d+4}")
    I("\n".join([cv(d, d), cv(d+1, d+2), cv(d+2, d+5), f"v_mov_b32 v{d+3}, 0"]))
    I(f"buffer_store_dwordx2 {V(d,2)}, v{vL16}, {S(sWS)}, s{sT1} offen offset:{rb*1024} sc1")
    last["o"] = I(f"buffer_store_dwordx2 {V(d+2,2)}, v{a2}, {S(sWS)}, s{sT2} offen offset:{rb*1024} sc1")
finish(4)

stamp()
ACC = 48; OMG = 120; vKb = 157; vQ3 = 158
def acc(tau, rb): return ACC + 8*tau + 4*rb
I(f"""v_bfe_u32 v{a4}, v{vLane}, 2, 4
v_mul_u32_u24 v{a4}, 288, v{a4}
v_and_b32 v{a5}, 3, v{vLane}
v_lshl_add_u32 v{vKb}, v{a5}, 3, v{a4}
v_add_u32 v{vK8}, 256, v{vKb}""")
for c in range(4): I(f"s_add_u32 s{sT3}, s{sq}, {c}\ns_and_b32 s{sT3}, s{sT3}, 3\ns_lshl_b32 s{sT3}, s{sT3}, 5\nv_add_u32 v{vK[c]}, s{sT3}, v{vKb}")
I(f"""s_and_b32 s{sT3}, s{sjj}, 1
s_lshl_b32 s{sT3}, s{sT3}, 2
s_add_u32 s{sT3}, s{sT3}, s{sw}
v_and_b32 v{a4}, 15, v{vLane}
v_lshl_add_u32 v{a4}, s{sT3}, 5, v{a4}
v_lshlrev_b32 v{a4}, 2, v{a4}
v_add_u32 v{a4}, {GARR}, v{a4}
ds_read_b32 v{OMG}, v{a4}
ds_read_b32 v{OMG+1}, v{a4} offset:64
v_lshrrev_b32 v{vQ3}, 4, v{vLane}
v_mul_u32_u24 v{vQ3}, {32*288}, v{vQ3}
s_and_b32 s{sT4}, s{sFl}, 0xffffff80
v_sub_f32 v{OMG}, 1.0, v{OMG}
v_sub_f32 v{OMG+1}, 1.0, v{OMG+1}""")
jobs = []
cur = [0]
def k2_sync(G):
    def f():
        sc.require(f"w{G}") if G > 2 else None
        vm = last[f"w{G}"]
        if G == 9: sc.require("w10"); vm = last["w10"]
        if G == 2: vm = max(vm, last["o"])
        p.wait(vm=vm, ds=p.nds); I("s_barrier")
        d = (G % 4 - cur[0]) * SL2; cur[0] = G % 4
        if d:
            for r in vK + [vK8]: I(f"v_add_u32 v{r}, {d & 0xffffffff}, v{r}")
        if G == 2: flag_store(sFl, FL_C)
        n0 = sc.n
        if G == 0: spread(w2_dma(3), n0 + 4, 40, "w3")
        elif G + 3 <= 10: spread(w2_dma(G + 3), n0 + 4, 30, f"w{G+3}")
        if G == 0: poll_issue(sT4, FL_B, at=n0 + 44)
        if G == 1: poll_item("pB", at=0); spread(h_loads(range(16, 24)), n0 + 34, 30, "hB0")
        if G == 2: spread(h_loads(range(24, 32)), n0 + 34, 30, "hB1")
        if G == 3: poll_issue(sT4, FL_C, at=n0 + 40)
        if G == 4: poll_item("pC", at=0); spread(h_loads(range(32, 41)), n0 + 34, 34, "hC")
    return f
for u in range(41):
    G = min(u >> 2, 9)
    for tau in range(9):
        va = vK8 if tau == 8 else vK[tau & 3]; co = 128 * (tau >> 2) if tau < 8 else 0
        if u < 36:   o0 = (u & 3) * 9216 + co; o1 = o0 + 4608
        elif u < 40: o0 = (u - 36) * 36 * 288 + co; o1 = o0 + 18 * 288
        else:        o0 = 16 * 288 + co; o1 = o0 + 18 * 288
        j = dict(rd=(lambda r, va=va, o0=o0, o1=o1: tr(r, va, o0, o1)),
                 mf=(lambda r, u=u, tau=tau: [f"{MF} {V(acc(tau,rb))}, {V(r)}, {HF(u,rb)}, {V(acc(tau,rb)) if u else 0}" for rb in range(2)]))
        if tau == 0 and u % 4 == 0 and u <= 36: j["sync"] = k2_sync(G)
        if tau == 0 and u == 40: j["extra"] = [f"v_add_u32 v{r}, v{vQ3}, v{r}" for r in vK + [vK8]]
        if tau == 0 and u in (16, 24, 32): j["need"] = [{16: "hB0", 24: "hB1", 32: "hC"}[u]]
        if u == 35:
            def f(tau=tau):
                for rb in range(2):
                    for r in range(4): sc.add("E", f"v_mul_f32 v{acc(tau,rb)+r}, v{acc(tau,rb)+r}, v{OMG+rb}", at=sc.n + 3, name=f"sc{tau}" if (rb, r) == (1, 3) else None)
            j["after"] = f
        if u == 36: j["need"] = j.get("need", []) + [f"sc{tau}"]
        jobs.append(j)
run(jobs, 6, 8, 3)
finish(5)

stamp()
ID = 128; TU = 176; IN = 0
I(f"""s_lshl_b32 s{sT0}, s{smp}, 2
s_add_u32 s{sT0}, s{sT0}, s{sn}
s_lshl_b32 s{sT0}, s{sT0}, 4
s_add_u32 s{sT0}, s{sT0}, s{sw}""")
for tau in (1, 5, 2, 6, 3, 7, 8):
    k = TU + 4 * (tau - 1 if tau < 8 else 7)
    I("\n".join([cv(k, acc(tau,0)), cv(k+1, acc(tau,0)+2), cv(k+2, acc(tau,1)), cv(k+3, acc(tau,1)+2)]))
    if tau in (1, 2, 3):
        I(f"s_add_u32 s{sT3}, s{sq}, {tau}\ns_and_b32 s{sT3}, s{sT3}, 3\ns_lshl_b32 s{sT3}, s{sT3}, 2\ns_add_u32 s{sT3}, s{sT3}, s{sT0}\ns_mul_i32 s{sT3}, s{sT3}, 9216\ns_add_u32 s{sT1}, s{sT3}, {WS_X + (tau-1)*3072}")
    if tau < 8: I(f"buffer_store_dwordx4 {V(k)}, v{vL16}, {S(sWS)}, s{sT1} offen offset:{1024*(tau>>2)} sc1")
I(f"""s_sub_u32 s{sT3}, s{sw}, s{sq}
s_and_b32 s{sT6}, s{sT3}, 3
s_lshl_b32 s{sT3}, s{sw}, 2
s_add_u32 s{sT3}, s{sT3}, s{sT0}
s_mul_i32 s{sT3}, s{sT3}, 9216
s_mul_i32 s{sT1}, s{sT6}, 3072
s_add_u32 s{sT1}, s{sT1}, s{sT3}
s_add_u32 s{sT1}, s{sT1}, {WS_X - 3072 + 2048}
s_cmp_eq_u32 s{sT6}, 0
s_cselect_b32 s{sT2}, 0x80000000, 0
s_cselect_b32 s{sT5}, 0, 0x80000000
v_or_b32 v{a0}, s{sT2}, v{vL16}
v_or_b32 v{a1}, s{sT5}, v{vL16}""")
last["x"] = I(f"buffer_store_dwordx4 {V(TU+28)}, v{a0}, {S(sWS)}, s{sT1} offen sc1")
I(f"""v_add_u32 v{a2}, s{sq}, v{vLane}
v_and_b32 v{a2}, 3, v{a2}
v_lshl_add_u32 v{a2}, v{a2}, 2, s{sT0}
v_lshlrev_b32 v{a2}, 7, v{a2}
v_lshl_add_u32 v{a2}, v{vLane}, 2, v{a2}
v_add_u32 v{a2}, {WS_FL + FL_X - 4}, v{a2}
v_bfrev_b32 v{a3}, 1
v_subrev_u32 v{a4}, 1, v{vLane}
v_cmp_gt_u32 vcc, 3, v{a4}
v_cndmask_b32 v{a2}, v{a3}, v{a2}, vcc
v_min_u32 v{vPA}, 2, v{vLane}
v_lshlrev_b32 v{vPA}, 2, v{vPA}
s_lshl_b32 s{sT3}, s{sq}, 2
s_add_u32 s{sT3}, s{sT3}, s{sT0}
s_lshl_b32 s{sQs}, s{sT3}, 7
s_add_u32 s{sQs}, s{sQs}, {WS_FL + FL_X}
s_mul_i32 s{sT3}, s{sT3}, 9216
s_add_u32 s{sT3}, s{sT3}, {WS_X}
v_lshrrev_b32 v{a4}, 4, v{vLane}
v_bfe_u32 v{a5}, v{vLane}, 2, 2
v_cmp_eq_u32 vcc, v{a4}, v{a5}
v_and_b32 v{a4}, 1, v{vLane}
v_lshlrev_b32 v{a4}, 4, v{a4}
v_mov_b32 v{a5}, 0x3f80
v_lshlrev_b32 v{a5}, v{a4}, v{a5}
v_cndmask_b32 v{a5}, 0, v{a5}, vcc
v_and_b32 v{a4}, 2, v{vLane}
v_cmp_eq_u32 vcc, 0, v{a4}
v_mov_b32 v{ID}, 0
v_mov_b32 v{ID+1}, 0
v_cndmask_b32 v{ID+2}, 0, v{a5}, vcc
v_mov_b32 v{ID+4}, 0
v_mov_b32 v{ID+5}, 0
v_sub_u32 v{ID+3}, v{a5}, v{ID+2}
v_mov_b32 v{vS}, s{sNonce}""")
p.wait(vm=last["x"])
I(f"buffer_store_dword v{vS}, v{a2}, {S(sWS)}, 0 offen sc1")
I(f"buffer_load_dword v{vPoll}, v{vPA}, {S(sWS)}, s{sQs} offen sc1")
I(f"""v_and_b32 v{a4}, 15, v{vLane}
v_mul_u32_u24 v{a4}, 1152, v{a4}
v_lshrrev_b32 v{a5}, 4, v{vLane}
v_lshl_add_u32 v{a4}, v{a5}, 3, v{a4}
v_or_b32 v{a5}, s{sT5}, v{a4}
s_lshl_b32 s{sT1}, s{smp}, 2
s_add_u32 s{sT1}, s{sT1}, s{sw}
s_mul_i32 s{sT1}, s{sT1}, {32*1152}
s_mul_i32 s{sT2}, s{sn}, 288
s_add_u32 s{sT1}, s{sT1}, s{sT2}
s_lshl_b32 s{sT2}, s{sq}, 5
s_add_u32 s{sT2}, s{sT2}, s{sT1}
s_add_u32 s{sT6}, s{sT1}, {16*1152}
s_add_u32 s{sT0}, s{sT2}, {16*1152}""")
poll_check(vPoll, vPA, f"s{sQs}")
for d in range(3):
    for i in range(3): I(f"buffer_load_dwordx4 a[{12*d+4*i}:{12*d+4*i+3}], v{vL16 if i < 2 else a1}, {S(sWS)}, s{sT3} offen offset:{1024*i} sc1")
    if d < 2: I(f"s_add_u32 s{sT3}, s{sT3}, 3072")
for d in range(3):
    for i, tau in enumerate((0, 4, 8)):
        for rb in range(2): I(f"{MF} {V(acc(tau,rb))}, {V(ID+2-2*rb)}, a[{12*d+4*i}:{12*d+4*i+3}], {V(acc(tau,rb))}")
for i, tau in enumerate((0, 4, 8)):
    for rb in range(2):
        k = acc(tau, rb); I(cv(k, k) + "\n" + cv(k+1, k+2))
        so = (sT2, sT0)[rb] if tau < 8 else (sT1, sT6)[rb]
        I(f"buffer_store_dwordx2 {V(k,2)}, v{a4 if tau < 8 else a5}, {S(sOUT)}, s{so} offen offset:{(0,128,256)[i]}")
stamp()
I("s_branch L_end")
out()
```
